```python
import torch

def _softmax(x, axis=-1):
    return torch.softmax(x, dim=axis)
def _gelu(x):
    return torch.nn.functional.gelu(x, approximate="tanh")
def _silu(x):
    return torch.nn.functional.silu(x)
def _sigmoid(x):
    return torch.sigmoid(x)
def _layernorm(x, axis=-1, eps=1e-5):
    m = x.mean(dim=axis, keepdim=True)
    v = x.var(dim=axis, keepdim=True, unbiased=False)
    return (x - m) / torch.sqrt(v + eps)
def _scatter_add(tgt, idx, src, axis=0):
    return tgt.clone().index_add_(axis, idx, src)
def _segment_sum(src, seg, n):
    out = torch.zeros((n,) + src.shape[1:], dtype=src.dtype)
    return out.index_add_(0, seg, src)
def _pad(x, pw):
    flat = tuple(v for pair in reversed(pw) for v in pair)
    return torch.nn.functional.pad(x, flat)

kernel_name = 'interleave_layers__sliding_block_cached__mixer_channel_mlp__decode'

def setup_inputs():

    _w = (lambda a: (lambda t: t.to(torch.bfloat16) if t.is_floating_point() else t)(torch.as_tensor(a)))
    def _A_setup():
        B, Sq, D = 8, 1, 1024
        Hq, Hkv, Sk, Dh = 32, 4, 4096, 128
        assert Hq % Hkv == 0, (Hq, Hkv)
        return {
            "x": _w((lambda *s: torch.randn(*s, dtype=torch.bfloat16) * 0.05)(B, Sq, D)),
            "k_cache": _w((lambda *s: torch.randn(*s, dtype=torch.bfloat16) * 1.6)(B, Hkv, Sk, Dh)),
            "v_cache": _w((lambda *s: torch.randn(*s, dtype=torch.bfloat16) * 1.6)(B, Hkv, Sk, Dh)),
            "wq": _w((lambda *s: torch.randn(*s, dtype=torch.bfloat16) * 1.6)(D, Hq * Dh) * (D ** -0.5)),
            "wo": _w((lambda *s: torch.randn(*s, dtype=torch.bfloat16) * 1.6)(Hq * Dh, D) * ((Hq * Dh) ** -0.5)),
        }
    _A_in = _A_setup()

    def _B_setup():
        B, S, D, F = 8, 1, 1024, 3584
        return {
            "x": _w((lambda *s: torch.randn(*s, dtype=torch.bfloat16) * 0.05)(B, S, D)),
            "w1": _w((lambda *s: torch.randn(*s, dtype=torch.bfloat16) * 3.2)(D, F) * (D ** -0.5)),
            "b1": _w((lambda *s: torch.randn(*s, dtype=torch.bfloat16) * 0.8)(F)),
            "w2": _w((lambda *s: torch.randn(*s, dtype=torch.bfloat16) * 0.4)(F, D) * (F ** -0.5)),
            "b2": _w((lambda *s: torch.randn(*s, dtype=torch.bfloat16) * 0.4)(D)),
        }
    _B_in = _B_setup()

    return {
        "A_x": _A_in["x"],
        "A_k_cache": _A_in["k_cache"],
        "A_v_cache": _A_in["v_cache"],
        "A_wq": _A_in["wq"],
        "A_wo": _A_in["wo"],
        "B_x": _B_in["x"],
        "B_w1": _B_in["w1"],
        "B_b1": _B_in["b1"],
        "B_w2": _B_in["w2"],
        "B_b2": _B_in["b2"],
    }

def reference(A_x, A_k_cache, A_v_cache, A_wq, A_wo, B_x, B_w1, B_b1, B_w2, B_b2):
    def _A_ref(x, k_cache, v_cache, wq, wo):
        B, Sq, D = x.shape
        Hq, Dh = 32, 128
        Hkv, Sk = k_cache.shape[1], k_cache.shape[2]
        W = min(4096, max(256, Sk // 4))
        rep = Hq // Hkv
        q = (lambda x, *d: x.permute(*d))((x @ wq).reshape(B, Sq, Hq, Dh), 0, 2, 1, 3)
        k = (lambda x, n, axis: torch.repeat_interleave(x, n, dim=axis))(k_cache[:, :, Sk - W:, :], rep, axis=1)
        v = (lambda x, n, axis: torch.repeat_interleave(x, n, dim=axis))(v_cache[:, :, Sk - W:, :], rep, axis=1)
        scores = torch.einsum("bhqd,bhkd->bhqk", q, k) * (Dh ** -0.5)
        p = _softmax(scores, axis=-1)
        o = torch.einsum("bhqk,bhkd->bhqd", p, v)
        return (lambda x, *d: x.permute(*d))(o, 0, 2, 1, 3).reshape(B, Sq, Hq * Dh) @ wo

    def _B_ref(x, w1, b1, w2, b2):
        y = _layernorm(x, axis=-1)
        h = _gelu(torch.einsum("bsd,df->bsf", y, w1) + b1)
        return torch.einsum("bsf,fd->bsd", h, w2) + b2

    x = A_x
    x = x + _A_ref(_layernorm(x, axis=-1), A_k_cache, A_v_cache, A_wq, A_wo)
    x = x + _B_ref(_layernorm(x, axis=-1), B_w1, B_b1, B_w2, B_b2)
    x = x + _A_ref(_layernorm(x, axis=-1), A_k_cache, A_v_cache, A_wq, A_wo)
    x = x + _B_ref(_layernorm(x, axis=-1), B_w1, B_b1, B_w2, B_b2)
    return x
```

```python
import re

def parse_regs(tok):
    tok = tok.strip()
    tok = tok.lstrip('-')
    m = re.fullmatch(r'abs\((.*)\)', tok)
    if m: tok = m.group(1)
    m = re.fullmatch(r'\|(.*)\|', tok)
    if m: tok = m.group(1)
    m = re.fullmatch(r'([vas])(\d+)', tok)
    if m: return {(m.group(1), int(m.group(2)))}
    m = re.fullmatch(r'([vas])\[(\d+):(\d+)\]', tok)
    if m: return {(m.group(1), i) for i in range(int(m.group(2)), int(m.group(3)) + 1)}
    if tok in ('vcc', 'vcc_lo', 'vcc_hi'): return {('x', 'vcc')}
    if tok in ('exec', 'exec_lo', 'exec_hi'): return {('x', 'exec')}
    if tok == 'm0': return {('x', 'm0')}
    return set()

TRANS = ('v_exp_f32', 'v_log_f32', 'v_rcp_f32', 'v_rsq_f32', 'v_sqrt_f32', 'v_sin_f32', 'v_cos_f32')

class Ins:
    def __init__(self, text):
        self.text = text
        t = text.split(';')[0].strip()
        parts = t.split(None, 1)
        self.op = parts[0]
        rest = parts[1] if len(parts) > 1 else ''
        ops, depth, cur = [], 0, ''
        for ch in rest:
            if ch == '[': depth += 1
            if ch == ']': depth -= 1
            if ch == ',' and depth == 0:
                ops.append(cur.strip()); cur = ''
            else: cur += ch
        if cur.strip(): ops.append(cur.strip())
        mods = ''
        if ops:
            sp = ops[-1].split(None, 1)
            ops[-1] = sp[0]
            mods = sp[1] if len(sp) > 1 else ''
        self.ops, self.mods = ops, mods
        op = self.op
        self.is_mfma = op.startswith('v_mfma')
        self.is_valu = op.startswith('v_') and not self.is_mfma
        self.is_salu = op.startswith('s_')
        self.is_ds = op.startswith('ds_')
        self.is_vmem = op.startswith('buffer_') or op.startswith('global_')
        self.is_dpp = '_dpp' in op or 'row_' in mods or 'quad_perm' in mods
        self.is_perm = op.startswith('v_permlane')
        self.is_trans = any(op.startswith(x) for x in TRANS)
        self.is_dot = op.startswith('v_dot')
        self.is_lds_dma = self.is_vmem and ' lds' in (' ' + mods)
        R = [parse_regs(o) for o in ops]
        dst, src = set(), set()
        self.srcC = set(); self.srcAB = set(); self.sdata = set()
        if self.is_mfma:
            dst = R[0]; self.srcAB = R[1] | R[2]; self.srcC = R[3]; src = self.srcAB | self.srcC
        elif self.is_valu:
            if self.is_perm:
                dst = R[0] | R[1]; src = R[0] | R[1]
            else:
                dst = R[0]
                for r in R[1:]: src |= r
                if op.startswith(('v_fmac', 'v_dot2c', 'v_writelane')) or self.is_dpp: src |= R[0]
                if op.startswith(('v_add_co', 'v_sub_co', 'v_addc_co')): dst |= R[1]
                if op.startswith('v_cndmask') and len(ops) == 3: src |= {('x', 'vcc')}
            if self.is_dot and len(R) == 4: self.srcC = R[3]; self.srcAB = R[1] | R[2]
        elif self.is_ds:
            if op.startswith('ds_read'):
                dst = R[0]
                for r in R[1:]: src |= r
            else:
                for r in R: src |= r
        elif self.is_vmem:
            if '_load' in op and not self.is_lds_dma:
                dst = R[0]
                for r in R[1:]: src |= r
            else:
                for r in R: src |= r
                if self.is_lds_dma: src |= {('x', 'm0')}
                if '_store' in op:
                    self.sdata = R[0] if op.startswith('buffer') else R[1]
        elif self.is_salu:
            if op.startswith(('s_cmp', 's_cbranch', 's_branch', 's_waitcnt', 's_nop', 's_barrier', 's_sleep', 's_endpgm', 's_setprio', 's_bitcmp')):
                for r in R: src |= r
            else:
                dst = R[0] if R else set()
                for r in R[1:]: src |= r
        self.dst, self.src = dst, src
        self.wide_store = self.is_vmem and '_store' in op and op.endswith(('x3', 'x4'))
        self.states = 1
        if op == 's_nop': self.states = int(ops[0], 0) + 1

def need(prev, cur):
    n = 0
    pv = {r for r in prev.dst if r[0] in 'va'}
    ps = {r for r in prev.dst if r[0] == 's' or r == ('x', 'vcc')}
    if prev.is_valu:
        if cur.is_mfma and pv & cur.src: n = max(n, 2)
        if cur.is_valu and (cur.is_dpp or cur.is_perm) and pv & cur.src: n = max(n, 2)
        if prev.is_trans and cur.is_valu and not cur.is_trans and pv & cur.src: n = max(n, 1)
        if prev.is_trans and cur.is_valu and cur.is_trans and pv & cur.src: n = max(n, 1)
        if cur.op.startswith(('v_readfirstlane', 'v_readlane')) and pv & cur.src: n = max(n, 1)
        if ps:
            if cur.is_valu and ps & cur.src: n = max(n, 4 if cur.op.startswith(('v_readlane', 'v_writelane')) else 2)
            if cur.is_vmem and ps & cur.src: n = max(n, 5)
            if cur.is_salu and ps & cur.src: n = max(n, 1)
        if prev.is_dot:
            if cur.op == prev.op:
                if pv & cur.srcAB: n = max(n, 3)
            elif pv & (cur.src | cur.dst): n = max(n, 3)
    if prev.is_mfma:
        big = ('32x32' in prev.op) or prev.op.endswith('x4_f32')
        k = 12 if big else 8
        if cur.is_mfma:
            if pv & cur.srcAB: n = max(n, k)
            if pv & cur.srcC and pv != cur.srcC: n = max(n, k - 2)
            if pv & cur.dst and pv != cur.srcC: n = max(n, k)
        elif (cur.is_valu or cur.is_vmem or cur.is_ds) and pv & (cur.src | cur.dst): n = max(n, k)
        if cur.is_valu and prev.srcC & cur.dst: n = max(n, 7 if big else 3)
    if prev.is_salu and ('x', 'm0') in prev.dst and cur.is_lds_dma: n = max(n, 1)
    if prev.wide_store and prev.sdata & cur.dst: n = max(n, 2)
    return n

class Asm:
    def __init__(self):
        self.lines = []
        self.nops = 0
    def raw(self, text):
        self.lines.append(text)
    def label(self, name):
        self.lines.append(name + ':')
    def c(self, text):
        self.lines.append('    ; ' + text)
    def __call__(self, text):
        for t in text.split('\n'):
            t = t.strip()
            if not t: continue
            if t.startswith(';'):
                self.lines.append('    ' + t); continue
            if t.endswith(':'):
                self.lines.append(t); continue
            ins = Ins(t)
            dist = 0; req = 0
            for p in reversed(self.lines):
                if not isinstance(p, Ins): continue
                if dist >= 14: break
                req = max(req, need(p, ins) - dist)
                dist += p.states
                if p.op in ('s_branch', 's_endpgm'): break
            if req > 0:
                self.lines.append(Ins('s_nop %d' % (req - 1))); self.nops += 1
            self.lines.append(ins)
    def text(self):
        out = []
        for l in self.lines:
            out.append('    ' + l.text if isinstance(l, Ins) else l)
        return '\n'.join(out) + '\n'

class Regs:
    def __init__(self, kind, start, limit):
        self.kind, self.next, self.limit, self.names = kind, start, limit, {}
    def alloc(self, name, n=1, align=None):
        if align is None: align = 1 if n == 1 else (2 if n == 2 else 4)
        self.next = (self.next + align - 1) // align * align
        base = self.next; self.next += n
        assert self.next <= self.limit, 'out of %s regs at %s' % (self.kind, name)
        self.names[name] = (base, n)
        return R(self.kind, base, n)

class R:
    def __init__(self, kind, base, n): self.kind, self.base, self.n = kind, base, n
    def __str__(self):
        return '%s%d' % (self.kind, self.base) if self.n == 1 else '%s[%d:%d]' % (self.kind, self.base, self.base + self.n - 1)
    def __getitem__(self, i):
        if isinstance(i, slice):
            a = i.start or 0; b = i.stop if i.stop is not None else self.n
            assert 0 <= a < b <= self.n
            return R(self.kind, self.base + a, b - a)
        assert 0 <= i < self.n
        return R(self.kind, self.base + i, 1)
    def __format__(self, spec): return str(self)
```

```python
import sys, os
sys.path.insert(0, os.path.dirname(__file__))
from asmlib import Asm, Regs, R

NAME = 'interleave_layers__sliding_block_cached__mixer_channel_mlp__decode'

DEFAULTS = dict(
    debug=0,
    nt='nt',
    sl_B=(8, 8), sl_C=(8, 8), sl_D=(8, 8), sl_E=(3, 3), sl_F=(3, 3), sl_G=(8, 8), sl_E2=(3, 3),
    force_slow=0,
)

REG = 8704
QOFF, HOFF, DOFF, GOFF, OOFF, XOFF = 0, 1024, 2048, 4096, 6144, 8192
OS_BASE = 256 * REG
XS_BASE = OS_BASE + 16384
WS_END = XS_BASE + 16384
STAMP_BASE = 0x240000
SLOT = [0, 32768, 65536, 98304]
STG = 131072
A_FR, A_ST, A_Q, A_P, A_PM, A_O, A_H = 0, 4096, 6144, 8192, 10240, 11264, 13312
LDS_BYTES = STG + 15360

ONES_BF = 0x3F803F80
RIDX = dict(Q=20, A=21, O=22, X1=23, M=24, H=25, X2=26)

def gen(**kw):
    P = dict(DEFAULTS); P.update(kw)
    dbg = P['debug']
    a = Asm()
    S = Regs('s', 4, 100)
    V = Regs('v', 1, 256)
    srd = {}
    for n in ['x', 'k', 'v', 'wq', 'wo', 'w1', 'b1', 'w2', 'b2', 'out', 'dbg', 'ws']:
        srd[n] = S.alloc('srd_' + n, 4)
    karg = dict(x=0, k=8, v=16, wq=24, wo=32, w1=48, b1=56, w2=64, b2=72, out=80, dbg=88, ws=96)
    size = dict(x=16384, k=33554432, v=33554432, wq=8388608, wo=8388608, w1=7340032, b1=7168, w2=7340032,
                b2=2048, out=16384, dbg=256, ws=(0x280000 if dbg else WS_END))
    sW = S.alloc('w'); sJ = S.alloc('j'); sC = S.alloc('c'); sKq = S.alloc('kq'); sT = S.alloc('t'); sHi = S.alloc('chi')
    sNb = S.alloc('nb'); sOwn = S.alloc('own'); sLayer = S.alloc('layer'); sPar = S.alloc('par'); sLocal = S.alloc('local')
    sRetry = S.alloc('retry'); sM0 = S.alloc('m0base')
    sO_wq = S.alloc('o_wq'); sO_w1 = S.alloc('o_w1'); sO_wo = S.alloc('o_wo'); sO_w2 = S.alloc('o_w2'); sO_kv = S.alloc('o_kv')
    sC16 = [None, S.alloc('c16_1'), S.alloc('c16_2'), S.alloc('c16_3')]
    sC64 = [None, S.alloc('c64_1'), S.alloc('c64_2'), S.alloc('c64_3')]
    sT0 = S.alloc('t0'); sT1 = S.alloc('t1'); sT2 = S.alloc('t2'); sT3 = S.alloc('t3')
    sTP = S.alloc('tp', 2)
    sC1 = S.alloc('gelu_c1', 2)
    sScale = S.alloc('scale')
    sSt = [S.alloc('st0', 2), S.alloc('st1', 2)]
    vL = V.alloc('l'); vI = V.alloc('i'); vG = V.alloc('g'); vB7 = V.alloc('b7')
    t = [V.alloc('t%d' % i) for i in range(12)]
    aE = V.alloc('aE'); aES = V.alloc('aES'); aQg = V.alloc('aQg'); aOg = V.alloc('aOg'); aOs = V.alloc('aOs')
    aX = V.alloc('aX'); aF = V.alloc('aF')
    pQ = V.alloc('pQ'); pO = V.alloc('pO'); pOS = V.alloc('pOS'); pD = V.alloc('pD'); pX = V.alloc('pX'); pXS = V.alloc('pXS')
    lFRw = V.alloc('lFRw'); lSTw = V.alloc('lSTw'); lR0 = V.alloc('lR0'); lR1 = V.alloc('lR1'); lSTr = V.alloc('lSTr')
    lQw = V.alloc('lQw'); lVw = V.alloc('lVw'); lPw = V.alloc('lPw'); lPMw = V.alloc('lPMw'); lPMr = V.alloc('lPMr')
    l64 = V.alloc('l64'); l128 = V.alloc('l128')
    dWq = V.alloc('dWq'); dW1 = V.alloc('dW1'); dW = V.alloc('dW'); dV = V.alloc('dV'); dK = V.alloc('dK')
    vStamp = V.alloc('stamp')
    Mk = V.alloc('Mk', 4); SelD = V.alloc('SelD', 4); SelF = V.alloc('SelF', 4); Ones = V.alloc('Ones', 4)
    csQ = V.alloc('csQ', 4); cs1 = V.alloc('cs1', 4)
    xc = V.alloc('xc', 4); xo = V.alloc('xo', 4); b1r = V.alloc('b1r', 4); b2h = V.alloc('b2h', 4)
    C0 = V.alloc('c0', 2); One2 = V.alloc('one2', 2)
    Gd = V.alloc('Gd', 16); Gs = V.alloc('Gs', 2); sn = V.alloc('sn', 2)
    F = V.alloc('F', 32)
    acc = V.alloc('acc', 8); Pk = V.alloc('Pk', 4); W4 = V.alloc('W4', 16); U = V.alloc('U', 8)
    NV = V.next
    aWq, aK, aV, aWo, aW1, aW2 = 0, 32, 64, 96, 128, 160
    def ar(base, n): return R('a', base, n)
    NT = P['nt']
    ool = []
    nstamp = [0]
    def stamp(idx, layer_dep=True):
        if not dbg: return
        p = sSt[0]
        a(f's_memrealtime {p}')
        a('s_waitcnt lgkmcnt(0)')
        if layer_dep:
            a(f's_lshl_b32 {sT3}, {sLayer}, 5')
            a(f's_add_u32 {sT3}, {sT3}, {idx}')
            a(f's_mov_b32 m0, {sT3}')
            a(f'v_writelane_b32 {vStamp}, {p[0]}, m0')
        else:
            a(f'v_writelane_b32 {vStamp}, {p[0]}, {idx}')

    def dma(n, vo, srdn, so, step, slot, u0=0):
        a(f's_add_u32 {sT0}, {sM0}, {slot + u0 * 4096}')
        if u0: a(f's_add_u32 {sT1}, {so}, {u0 * step}')
        else: a(f's_mov_b32 {sT1}, {so}')
        for u in range(n):
            a(f's_mov_b32 m0, {sT0}')
            if u + 1 < n: a(f's_add_u32 {sT0}, {sT0}, 4096')
            a(f'buffer_load_dwordx4 {vo}, {srd[srdn]}, {sT1} offen {NT} lds')
            if u + 1 < n: a(f's_add_u32 {sT1}, {sT1}, {step}')

    def sleep(key):
        s0, s1 = P[key]
        if s0 == s1:
            if s0: a(f's_sleep {s0}')
        else:
            lab = f'L_sl_{key}'
            a(f's_cmp_eq_u32 {sLayer}, 0')
            a(f's_cbranch_scc1 {lab}_0')
            if s1: a(f's_sleep {s1}')
            a(f's_branch {lab}_e')
            a.label(f'{lab}_0')
            if s0: a(f's_sleep {s0}')
            a.label(f'{lab}_e')

    def check(regs, par):
        ins = []
        rs = list(regs)
        T = t[11]
        if par == 0 or par == 1:
            tt = '0xfe' if par == 0 else '0x80'
            ins.append(f'v_bitop3_b32 {T}, {rs[0]}, {rs[1]}, {rs[2] if len(rs) > 2 else rs[1]} bitop3:{tt}')
            k = 3
            while k < len(rs):
                r2 = rs[k + 1] if k + 1 < len(rs) else rs[k]
                ins.append(f'v_bitop3_b32 {T}, {T}, {rs[k]}, {r2} bitop3:{tt}')
                k += 2
            ins.append(f'v_and_b32 {T}, 1, {T}')
            ins.append(f'v_cmp_ne_u32 vcc, {par}, {T}')
        else:
            ins.append(f'v_bitop3_b32 {T}, {rs[0]}, {rs[1]}, {par} bitop3:0x7e')
            for r in rs[2:]:
                ins.append(f'v_bitop3_b32 {T}, {T}, {r}, {par} bitop3:0xf6')
            ins.append(f'v_and_b32 {T}, 1, {T}')
            ins.append(f'v_cmp_ne_u32 vcc, 0, {T}')
        return ins

    def interleave(x, y, ratio=2):
        out = []; y = list(y)
        for i in x:
            out.append(i)
            for _ in range(ratio):
                if y: out.append(y.pop(0))
        return out + y

    def gather(name, loads, l0_extra, l0_wait, body, stampidx):
        for x in loads: a(x)
        if l0_extra is not None:
            a(f's_cmp_eq_u32 {sLayer}, 0')
            a(f's_cbranch_scc0 L_{name}_w1')
            l0_extra()
            a(f's_waitcnt vmcnt({l0_wait})')
            a(f's_branch L_{name}_b')
            a.label(f'L_{name}_w1')
        a('s_waitcnt vmcnt(0)')
        a.label(f'L_{name}_b')
        for x in body: a(x)
        a(f's_cbranch_vccnz L_{name}_r')
        a.label(f'L_{name}_c')
        def retry():
            a.label(f'L_{name}_r')
            a(f's_sub_u32 {sRetry}, {sRetry}, 1')
            a(f's_cbranch_scc1 L_{name}_dead')
            if dbg:
                a(f's_lshl_b32 {sT3}, {sLayer}, 5')
                a(f's_add_u32 {sT3}, {sT3}, {stampidx}')
                a(f'v_readlane_b32 {sT2}, {vStamp}, {sT3}')
                a('s_nop 4')
                a(f's_add_u32 {sT2}, {sT2}, 1')
                a(f's_mov_b32 m0, {sT3}')
                a(f'v_writelane_b32 {vStamp}, {sT2}, m0')
            a('s_sleep 1')
            for x in loads: a(x)
            a('s_waitcnt vmcnt(0)')
            a(f's_branch L_{name}_b')
            a.label(f'L_{name}_dead')
            a(f's_mov_b32 {sRetry}, 0')
            a(f's_branch L_{name}_c')
        ool.append(retry)

    def local_store(name, instrs):
        def emit(flag):
            for (m, txt) in instrs:
                if m is not None: setexec(m)
                a(txt + flag)
        a(f's_cmp_eq_u32 {sLocal}, 0')
        a(f's_cbranch_scc1 L_{name}_slow')
        emit('')
        a.label(f'L_{name}_back')
        def slow():
            a.label(f'L_{name}_slow')
            emit(' sc1')
            a(f's_branch L_{name}_back')
        ool.append(slow)

    def setexec(m):
        lo, hi = m & 0xffffffff, m >> 32
        if m == (1 << 64) - 1:
            a('s_mov_b64 exec, -1')
        else:
            a(f's_mov_b32 exec_lo, 0x{lo:x}')
            a(f's_mov_b32 exec_hi, 0x{hi:x}')
    ALL = (1 << 64) - 1

    def tag(r, par):
        if par == 0: return f'v_and_b32 {r}, -2, {r}'
        if par == 1: return f'v_or_b32 {r}, 1, {r}'
        return f'v_and_or_b32 {r}, {r}, -2, {par}'

    a('s_cmp_ge_u32 s2, 256')
    a('s_cbranch_scc1 L_end')
    for n in ['ws', 'wq', 'x', 'k', 'dbg', 'v', 'wo', 'w1', 'b1', 'w2', 'b2', 'out']:
        a(f's_load_dwordx2 {srd[n][0:2]}, s[0:1], {karg[n]}')
    if dbg:
        a(f's_memrealtime {sSt[1]}')
    a(f'v_lshrrev_b32 {t[0]}, 6, v0')
    a(f'v_and_b32 {vL}, 63, v0')
    a(f'v_readfirstlane_b32 {sW}, {t[0]}')
    for n in srd:
        a(f's_mov_b32 {srd[n][2]}, 0x{size[n]:x}')
        a(f's_mov_b32 {srd[n][3]}, 0x20000')
    a(f's_and_b32 {sJ}, s2, 7')
    a(f's_lshr_b32 {sC}, s2, 3')
    a(f's_and_b32 {sKq}, {sC}, 3')
    a(f's_lshr_b32 {sT}, {sC}, 2')
    a(f's_lshr_b32 {sHi}, {sC}, 3')
    a(f's_and_b32 {sNb}, {sC}, 7')
    a(f's_mul_i32 {sOwn}, s2, {REG}')
    a(f's_lshl_b32 {sM0}, {sW}, 10')
    for k in range(4): a(f'v_mov_b32 {Gd[k]}, -1')
    a(f'v_lshlrev_b32 {t[1]}, 4, {vL}')
    a(f's_lshl_b32 {sT0}, {sW}, 11')
    a(f's_add_u32 {sT0}, {sT0}, {sOwn}')
    a(f'v_lshrrev_b32 {t[2]}, 3, {vL}')
    a(f'v_and_b32 {vB7}, 7, {vL}')
    a(f'v_and_b32 {t[3]}, 2, {t[2]}')
    a(f's_and_b32 {sT1}, {sW}, 1')
    a(f's_lshl_b32 {sT2}, {sT1}, 2')
    a(f'v_or_b32 {t[3]}, {sT2}, {t[3]}')
    a(f'v_xor_b32 {t[3]}, {vB7}, {t[3]}')
    a(f'v_lshlrev_b32 {t[3]}, 4, {t[3]}')
    a(f's_lshl_b32 {sT2}, {sW}, 3')
    a(f'v_add_u32 {t[4]}, {sT2}, {t[2]}')
    a(f'v_lshl_add_u32 {dWq}, {t[4]}, 13, {t[3]}')
    a(f'v_mul_u32_u24 {dW1}, 7168, {t[4]}')
    a(f'v_add_u32 {dW1}, {dW1}, {t[3]}')
    a(f's_lshl_b32 {sT2}, {sT}, 2')
    a(f's_lshr_b32 {sT2}, 0x37654210, {sT2}')
    a(f's_and_b32 {sT2}, {sT2}, 7')
    a(f's_lshl_b32 {sT3}, {sJ}, 3')
    a(f's_add_u32 {sT2}, {sT2}, {sT3}')
    a(f's_lshl_b32 {sT2}, {sT2}, 7')
    a(f's_lshl_b32 {sO_wq}, {sKq}, 21')
    a(f's_add_u32 {sO_wq}, {sO_wq}, {sT2}')
    a(f's_lshl_b32 {sT2}, {sJ}, 2')
    a(f's_add_u32 {sT2}, {sT2}, {sHi}')
    a(f's_lshl_b32 {sT2}, {sT2}, 20')
    a(f's_lshl_b32 {sT3}, {sNb}, 15')
    a(f's_add_u32 {sO_kv}, {sT2}, {sT3}')
    a(f's_add_u32 {sO_kv}, {sO_kv}, {3072 * 256}')
    a(f'v_and_b32 {vI}, 15, {vL}')
    a(f'v_lshrrev_b32 {vG}, 4, {vL}')
    a(f's_lshl_b32 {sT2}, {sHi}, 12')
    a(f's_lshl_b32 {sT3}, {sJ}, 6')
    a(f's_add_u32 {sT2}, {sT2}, {sT3}')
    a(f's_lshl_b32 {sT3}, {sNb}, 3')
    a(f's_add_u32 {sT2}, {sT2}, {sT3}')
    a(f's_add_u32 {sT2}, {sT2}, {OS_BASE}')
    a(f'v_lshlrev_b32 {pOS}, 9, {vB7}')
    a(f'v_add_u32 {pOS}, {sT2}, {pOS}')
    a('s_waitcnt lgkmcnt(0)')
    ws = srd['ws']
    a(f'buffer_store_dwordx4 {Gd[0:4]}, {t[1]}, {ws}, {sT0} offen sc1')
    a(f'buffer_store_dwordx4 {Gd[0:4]}, {t[1]}, {ws}, {sT0} offen offset:1024 sc1')
    a(f's_cmp_eq_u32 {sW}, 0')
    a('s_cbranch_scc0 L_clr1')
    setexec(0xffffffff)
    a(f's_add_u32 {sT0}, {sOwn}, {XOFF}')
    a(f'buffer_store_dwordx4 {Gd[0:4]}, {t[1]}, {ws}, {sT0} offen sc1')
    a('s_branch L_clrd')
    a.label('L_clr1')
    a(f's_cmp_eq_u32 {sW}, 1')
    a('s_cbranch_scc0 L_clr2')
    setexec(0xf)
    a(f's_lshl_b32 {sT0}, {sJ}, 11')
    a(f's_lshl_b32 {sT1}, {sC}, 6')
    a(f's_add_u32 {sT0}, {sT0}, {sT1}')
    a(f's_add_u32 {sT0}, {sT0}, {XS_BASE}')
    a(f'buffer_store_dwordx4 {Gd[0:4]}, {t[1]}, {ws}, {sT0} offen sc1')
    a('s_branch L_clrd')
    a.label('L_clr2')
    a(f's_cmp_eq_u32 {sW}, 2')
    a('s_cbranch_scc0 L_clr3')
    setexec(0xff)
    a(f'buffer_store_dwordx2 {Gd[0:2]}, {pOS}, {ws}, 0 offen sc1')
    a('s_branch L_clrd')
    a.label('L_clr3')
    a(f's_getpc_b64 {sTP}')
    a.label('L_pc')
    a(f's_sub_u32 {sTP[0]}, {sTP[0]}, L_pc-{NAME}_kernel')
    a(f's_subb_u32 {sTP[1]}, {sTP[1]}, 0')
    a(f's_lshl_b32 {sT0}, {sC}, 10')
    a(f's_cmp_lt_u32 {sT0}, L_end-{NAME}_kernel-1024')
    a('s_cbranch_scc0 L_clrd')
    a(f'v_add_u32 {t[5]}, {sT0}, {t[1]}')
    a(f'global_load_dwordx4 {U[0:4]}, {t[5]}, {sTP}')
    a.label('L_clrd')
    setexec(ALL)
    dma(8, dWq, 'wq', sO_wq, 32 * 8192, SLOT[0])
    a(f'v_lshlrev_b32 {t[5]}, 11, {vB7}')
    a(f'v_bfe_u32 {t[6]}, {vL}, 3, 1')
    a(f'v_lshl_add_u32 {t[5]}, {t[6]}, 6, {t[5]}')
    a(f'v_lshl_add_u32 {t[5]}, {vG}, 4, {t[5]}')
    a(f's_lshl_b32 {sT0}, {sW}, 9')
    for m in range(4):
        a(f'buffer_load_dwordx4 {W4[4 * m:4 * m + 4]}, {t[5]}, {srd["x"]}, {sT0} offen offset:{128 * m}')
    a(f'v_bfe_u32 {t[7]}, {vL}, 2, 1')
    a(f's_lshl_b32 {sT1}, {sW}, 1')
    a(f'v_add_u32 {t[7]}, {sT1}, {t[7]}')
    a(f'v_and_b32 {t[8]}, 3, {vL}')
    a(f'v_and_b32 {t[9]}, 1, {vG}')
    a(f'v_lshlrev_b32 {t[10]}, 4, {t[8]}')
    a(f'v_lshl_add_u32 {t[10]}, {t[9]}, 3, {t[10]}')
    a(f'v_lshl_add_u32 {pX}, {t[7]}, 11, {t[10]}')
    a(f's_lshl_b32 {sT1}, {sC}, 6')
    a(f'buffer_load_dwordx2 {xo[0:2]}, {pX}, {srd["x"]}, {sT1} offen')
    a(f'buffer_load_dwordx2 {b2h[0:2]}, {t[10]}, {srd["b2"]}, {sT1} offen')
    a(f'v_lshlrev_b32 {t[11]}, 4, {vI}')
    a(f'v_lshl_add_u32 {t[11]}, {t[9]}, 3, {t[11]}')
    a(f's_mul_i32 {sT1}, {sJ}, 896')
    a(f's_mul_i32 {sT2}, {sHi}, 224')
    a(f's_add_u32 {sT1}, {sT1}, {sT2}')
    a(f'buffer_load_dwordx2 {b1r[0:2]}, {t[11]}, {srd["b1"]}, {sT1} offen')
    a(f's_lshl_b32 {sT1}, {sW}, 2')
    a(f'v_add_u32 {t[0]}, {sT1}, {vG}')
    a(f'v_xor_b32 {t[1]}, {vI}, {t[0]}')
    a(f'v_lshlrev_b32 {t[1]}, 4, {t[1]}')
    a(f'v_lshl_add_u32 {dK}, {t[0]}, 8, {t[1]}')
    dma(8, dK, 'k', sO_kv, 4096, SLOT[1])
    a(f'v_and_b32 {t[1]}, 7, {t[0]}')
    a(f'v_lshlrev_b32 {t[1]}, 1, {t[1]}')
    a(f'v_xor_b32 {t[1]}, {vI}, {t[1]}')
    a(f'v_lshlrev_b32 {t[1]}, 4, {t[1]}')
    a(f'v_lshl_add_u32 {dV}, {t[0]}, 8, {t[1]}')
    a(f'v_lshl_add_u32 {dW}, {t[0]}, 11, {t[1]}')
    a(f's_mul_i32 {sO_w1}, {sKq}, {256 * 7168}')
    a(f's_mul_i32 {sT1}, {sJ}, 896')
    a(f's_add_u32 {sO_w1}, {sO_w1}, {sT1}')
    a(f's_lshl_b32 {sT1}, {sT}, 7')
    a(f's_add_u32 {sO_w1}, {sO_w1}, {sT1}')
    a(f's_lshl_b32 {sT1}, {sJ}, 2')
    a(f's_add_u32 {sT1}, {sT1}, {sHi}')
    a(f's_lshl_b32 {sO_wo}, {sT1}, 18')
    a(f's_lshl_b32 {sT2}, {sNb}, 8')
    a(f's_add_u32 {sO_wo}, {sO_wo}, {sT2}')
    a(f's_mul_i32 {sO_w2}, {sJ}, {448 * 2048}')
    a(f's_mul_i32 {sT3}, {sHi}, {112 * 2048}')
    a(f's_add_u32 {sO_w2}, {sO_w2}, {sT3}')
    a(f's_add_u32 {sO_w2}, {sO_w2}, {sT2}')
    for m in (1, 2, 3):
        a(f's_mov_b32 {sC16[m]}, {m * 16 * REG}')
        a(f's_mov_b32 {sC64[m]}, {m * 64 * REG}')
    a(f's_mov_b32 {sLayer}, 0')
    a(f's_mov_b32 {sPar}, 0')
    a(f's_mov_b32 {sRetry}, 100000')
    a(f's_mov_b32 {sC1[0]}, 0x{f2u(-0.1029432397):x}')
    a(f's_mov_b32 {sC1[1]}, 0x{f2u(-0.1029432397):x}')
    a(f's_mov_b32 {sScale}, 0x{f2u(1.4426950408889634 / 128 ** 0.5):x}')
    a(f'v_mov_b32 {C0[0]}, 0x{f2u(-2.302208198):x}')
    a(f'v_mov_b32 {C0[1]}, 0x{f2u(-2.302208198):x}')
    a(f'v_mov_b32 {One2[0]}, 1.0')
    a(f'v_mov_b32 {One2[1]}, 1.0')
    for k in range(4): a(f'v_mov_b32 {Ones[k]}, 0x{ONES_BF:x}')
    if dbg:
        a(f'v_mov_b32 {vStamp}, 0')
        a(f'v_writelane_b32 {vStamp}, {sSt[1][0]}, 0')
    a('s_waitcnt vmcnt(23)')
    a('s_barrier')
    a(f's_cmp_eq_u32 {sW}, 0')
    a('s_cbranch_scc0 L_noflag')
    a(f's_getreg_b32 {sT0}, hwreg(HW_REG_XCC_ID, 0, 4)')
    a(f's_or_b32 {sT0}, {sT0}, 0x80')
    a(f'v_mov_b32 {U[4]}, {sT0}')
    a(f'v_mov_b32 {U[5]}, s2')
    setexec(1)
    a(f'buffer_store_byte {U[4]}, {U[5]}, {srd["dbg"]}, 0 offen sc1')
    setexec(ALL)
    a.label('L_noflag')
    stamp(1, False)
    a(f's_mov_b32 {sT3}, {REG}')
    a(f'v_lshl_add_u32 {pX}, {t[7]}, 6, {t[10]}')
    a(f'v_add_u32 {pX}, {XOFF}, {pX}')
    a(f's_lshl_b32 {sT0}, {sJ}, 11')
    a(f's_lshl_b32 {sT1}, {sC}, 6')
    a(f's_add_u32 {sT1}, {sT1}, {sT0}')
    a(f's_add_u32 {sT1}, {sT1}, {XS_BASE}')
    a(f'v_lshlrev_b32 {pXS}, 3, {t[7]}')
    a(f'v_lshl_add_u32 {pXS}, {t[9]}, 2, {pXS}')
    a(f'v_add_u32 {pXS}, {sT1}, {pXS}')
    a(f's_lshl_b32 {sT1}, {sW}, 9')
    a(f's_add_u32 {sT1}, {sT1}, {sT0}')
    a(f's_add_u32 {sT1}, {sT1}, {XS_BASE}')
    a(f'v_lshlrev_b32 {aES}, 3, {vL}')
    a(f'v_add_u32 {aES}, {sT1}, {aES}')
    a(f'v_lshl_add_u32 {t[0]}, {vG}, 1, {t[6]}')
    a(f's_lshl_b32 {sT0}, {sT}, 3')
    a(f'v_add_u32 {t[0]}, {sT0}, {t[0]}')
    a(f'v_mul_lo_u32 {aX}, {t[0]}, {sT3}')
    a(f'v_lshlrev_b32 {t[1]}, 6, {t[7]}')
    a(f'v_lshl_add_u32 {t[1]}, {t[8]}, 4, {t[1]}')
    a(f's_lshl_b32 {sT0}, {sKq}, 9')
    a(f's_add_u32 {sT0}, {sT0}, {DOFF}')
    a(f'v_add3_u32 {aX}, {aX}, {t[1]}, {sT0}')
    a(f's_lshl_b32 {sT0}, {sKq}, 3')
    a(f's_lshl_b32 {sT1}, {sW}, 1')
    a(f's_add_u32 {sT0}, {sT0}, {sT1}')
    a(f's_lshl_b32 {sT0}, {sT0}, 3')
    a(f's_add_u32 {sT0}, {sT0}, {sJ}')
    a(f'v_lshl_add_u32 {t[0]}, {t[6]}, 3, {sT0}')
    a(f'v_mul_lo_u32 {aE}, {t[0]}, {sT3}')
    a(f'v_lshlrev_b32 {t[1]}, 6, {vB7}')
    a(f'v_lshl_add_u32 {t[1]}, {vG}, 4, {t[1]}')
    a(f'v_add_u32 {t[1]}, {XOFF}, {t[1]}')
    a(f'v_add_u32 {aE}, {aE}, {t[1]}')
    a(f'v_lshrrev_b32 {t[2]}, 1, {vG}')
    a(f's_lshl_b32 {sT1}, {sW}, 1')
    a(f'v_add_u32 {t[2]}, {sT1}, {t[2]}')
    a(f's_lshl_b32 {sT0}, {sHi}, 4')
    a(f'v_lshl_add_u32 {t[0]}, {t[2]}, 1, {t[6]}')
    a(f'v_add_u32 {t[0]}, {sT0}, {t[0]}')
    a(f'v_and_b32 {t[1]}, 7, {t[0]}')
    a(f'v_lshlrev_b32 {t[1]}, 2, {t[1]}')
    a(f's_mov_b32 {sT0}, 0x65437210')
    a(f'v_lshrrev_b32 {t[1]}, {t[1]}, {sT0}')
    a(f'v_and_b32 {t[1]}, 7, {t[1]}')
    a(f'v_lshl_add_u32 {t[1]}, {t[1]}, 2, {t[9]}')
    a(f'v_lshrrev_b32 {t[0]}, 3, {t[0]}')
    a(f'v_lshl_add_u32 {t[0]}, {t[1]}, 3, {t[0]}')
    a(f'v_mul_lo_u32 {aQg}, {t[0]}, {sT3}')
    a(f's_lshl_b32 {sT0}, {sJ}, 7')
    a(f's_add_u32 {sT0}, {sT0}, {QOFF}')
    a(f'v_lshlrev_b32 {t[1]}, 4, {vB7}')
    a(f'v_add3_u32 {aQg}, {aQg}, {t[1]}, {sT0}')
    a(f's_lshr_b32 {sT0}, {sJ}, 1')
    a(f's_lshl_b32 {sT0}, {sT0}, 6')
    a(f'v_lshl_add_u32 {t[0]}, {t[9]}, 3, {t[2]}')
    a(f'v_add_u32 {t[0]}, {sT0}, {t[0]}')
    a(f'v_mul_lo_u32 {aOg}, {t[0]}, {sT3}')
    a(f's_lshl_b32 {sT0}, {sJ}, 2')
    a(f's_add_u32 {sT0}, {sT0}, {sHi}')
    a(f's_and_b32 {sT1}, {sT0}, 7')
    a(f's_lshl_b32 {sT1}, {sT1}, 8')
    a(f's_add_u32 {sT1}, {sT1}, {OOFF}')
    a(f'v_lshlrev_b32 {t[1]}, 4, {vI}')
    a(f'v_add3_u32 {aOg}, {aOg}, {t[1]}, {sT1}')
    a(f'v_bfe_u32 {t[0]}, {vL}, 2, 1')
    a(f'v_xor_b32 {t[0]}, {t[0]}, {t[9]}')
    a(f'v_lshl_add_u32 {t[0]}, {t[8]}, 1, {t[0]}')
    a(f'v_lshl_add_u32 {t[0]}, {t[2]}, 3, {t[0]}')
    a(f's_lshl_b32 {sT0}, {sT0}, 9')
    a(f's_add_u32 {sT0}, {sT0}, {OS_BASE}')
    a(f'v_lshlrev_b32 {t[0]}, 3, {t[0]}')
    a(f'v_add_u32 {aOs}, {sT0}, {t[0]}')
    a(f'v_min_u32 {t[0]}, 13, {vI}')
    a(f's_mul_i32 {sT0}, {sHi}, 112')
    a(f'v_lshl_add_u32 {t[0]}, {t[0]}, 3, {sT0}')
    a(f'v_lshrrev_b32 {t[1]}, 6, {t[0]}')
    a(f'v_lshl_add_u32 {t[1]}, {t[1]}, 2, {t[9]}')
    a(f'v_lshl_add_u32 {t[1]}, {t[1]}, 3, {sJ}')
    a(f'v_mul_lo_u32 {aF}, {t[1]}, {sT3}')
    a(f'v_and_b32 {t[0]}, 63, {t[0]}')
    a(f'v_lshlrev_b32 {t[0]}, 1, {t[0]}')
    a(f'v_lshl_add_u32 {t[0]}, {t[2]}, 7, {t[0]}')
    a(f'v_add_u32 {t[0]}, {HOFF}, {t[0]}')
    a(f'v_add_u32 {aF}, {aF}, {t[0]}')
    a(f'v_lshrrev_b32 {t[3]}, 1, {vG}')
    a(f's_lshl_b32 {sT0}, {sW}, 5')
    a(f'v_lshlrev_b32 {pQ}, 7, {vB7}')
    a(f'v_lshl_add_u32 {pQ}, {t[3]}, 4, {pQ}')
    a(f'v_add_u32 {pQ}, {sT0}, {pQ}')
    a(f'v_lshlrev_b32 {t[0]}, 5, {t[9]}')
    a(f'v_lshl_add_u32 {t[0]}, {t[3]}, 4, {t[0]}')
    a(f's_lshl_b32 {sT0}, {sW}, 6')
    a(f's_add_u32 {sT0}, {sT0}, {OOFF}')
    a(f'v_lshl_add_u32 {pO}, {vB7}, 8, {t[0]}')
    a(f'v_add_u32 {pO}, {sT0}, {pO}')
    a(f's_lshl_b32 {sT0}, {sW}, 9')
    a(f's_add_u32 {sT0}, {sT0}, {DOFF}')
    a(f'v_lshl_add_u32 {pD}, {vB7}, 6, {t[0]}')
    a(f'v_add_u32 {pD}, {sT0}, {pD}')
    a(f'v_xor_b32 {t[0]}, {vB7}, {vG}')
    a(f'v_lshlrev_b32 {t[0]}, 4, {t[0]}')
    a(f'v_lshl_add_u32 {lR0}, {vG}, 7, {t[0]}')
    a(f'v_add_u32 {lR0}, {STG}, {lR0}')
    a(f'v_xor_b32 {lR1}, 64, {lR0}')
    a(f'v_lshlrev_b32 {t[0]}, 6, {t[6]}')
    a(f'v_xor_b32 {lFRw}, {lR0}, {t[0]}')
    a(f'v_lshl_add_u32 {lFRw}, {t[6]}, 9, {lFRw}')
    a(f's_and_b32 {sT0}, {sW}, 1')
    a(f's_lshl_b32 {sT0}, {sT0}, 6')
    a(f'v_xor_b32 {lPw}, {sT0}, {lR0}')
    a(f's_lshl_b32 {sT0}, {sW}, 9')
    a(f'v_add_u32 {lPw}, {sT0}, {lPw}')
    a(f'v_lshrrev_b32 {t[0]}, 5, {vL}')
    a(f'v_lshlrev_b32 {t[0]}, 7, {t[0]}')
    a(f'v_lshl_add_u32 {t[0]}, {vB7}, 4, {t[0]}')
    a(f'v_bfe_u32 {t[1]}, {vL}, 3, 2')
    a(f'v_lshl_add_u32 {t[0]}, {t[1]}, 2, {t[0]}')
    a(f's_lshl_b32 {sT0}, {sW}, 8')
    a(f's_add_u32 {sT0}, {sT0}, {STG + A_ST}')
    a(f'v_add_u32 {lSTw}, {sT0}, {t[0]}')
    a(f'v_lshlrev_b32 {lSTr}, 4, {vL}')
    a(f'v_add_u32 {lSTr}, {STG + A_ST}, {lSTr}')
    a(f'v_xor_b32 {t[0]}, {t[2]}, {vB7}')
    a(f'v_lshlrev_b32 {t[0]}, 4, {t[0]}')
    a(f'v_lshl_add_u32 {t[0]}, {vI}, 7, {t[0]}')
    a(f'v_lshl_add_u32 {t[0]}, {t[9]}, 3, {t[0]}')
    a(f'v_add_u32 {lQw}, {STG}, {t[0]}')
    a(f'v_and_b32 {t[0]}, 1, {vI}')
    a(f'v_lshl_add_u32 {t[0]}, {t[0]}, 1, {t[9]}')
    a(f'v_and_b32 {t[1]}, 4, {vI}')
    a(f'v_xor_b32 {t[1]}, {t[1]}, {t[0]}')
    a(f'v_xor_b32 {t[1]}, {t[1]}, {t[2]}')
    a(f'v_lshlrev_b32 {t[1]}, 4, {t[1]}')
    a(f'v_lshl_add_u32 {t[1]}, {t[0]}, 7, {t[1]}')
    a(f'v_lshrrev_b32 {t[0]}, 2, {vI}')
    a(f'v_lshl_add_u32 {t[1]}, {t[0]}, 9, {t[1]}')
    a(f'v_bfe_u32 {t[0]}, {vL}, 1, 1')
    a(f'v_lshl_add_u32 {t[1]}, {t[0]}, 3, {t[1]}')
    a(f'v_add_u32 {lVw}, {STG}, {t[1]}')
    a(f'v_lshlrev_b32 {lPMr}, 4, {vB7}')
    a(f'v_add_u32 {lPMr}, {STG + A_PM}, {lPMr}')
    a(f's_lshl_b32 {sT0}, {sW}, 2')
    a(f'v_add_u32 {lPMw}, {sT0}, {lPMr}')
    a(f'v_bfe_u32 {t[0]}, {vL}, 2, 2')
    a(f'v_lshrrev_b32 {t[1]}, 1, {t[0]}')
    a(f'v_lshl_add_u32 {t[1]}, {t[9]}, 1, {t[1]}')
    a(f'v_xor_b32 {t[1]}, {sW}, {t[1]}')
    a(f'v_lshlrev_b32 {t[1]}, 5, {t[1]}')
    a(f'v_lshl_add_u32 {t[1]}, {t[8]}, 3, {t[1]}')
    a(f'v_lshl_add_u32 {t[4]}, {vG}, 3, {t[0]}')
    a(f'v_lshl_add_u32 {l64}, {t[4]}, 7, {t[1]}')
    a(f'v_lshl_add_u32 {t[1]}, {t[9]}, 2, {t[0]}')
    a(f's_lshl_b32 {sT0}, {sW}, 1')
    a(f'v_xor_b32 {t[1]}, {sT0}, {t[1]}')
    a(f'v_lshlrev_b32 {t[1]}, 5, {t[1]}')
    a(f'v_lshl_add_u32 {t[1]}, {t[8]}, 3, {t[1]}')
    a(f'v_lshl_add_u32 {t[4]}, {vG}, 2, {t[0]}')
    a(f'v_lshl_add_u32 {l128}, {t[4]}, 8, {t[1]}')
    a(f'v_and_b32 {t[0]}, 1, {vL}')
    a(f'v_lshlrev_b32 {t[0]}, 4, {t[0]}')
    a(f's_mov_b32 {sT0}, 0xffff')
    a(f'v_lshlrev_b32 {t[0]}, {t[0]}, {sT0}')
    a(f'v_bfe_u32 {t[1]}, {vL}, 1, 2')
    for k in range(4):
        a(f'v_cmp_eq_u32 vcc, {k}, {t[1]}')
        a(f'v_cndmask_b32 {Mk[k]}, 0, {t[0]}, vcc')
        a(f'v_and_b32 {SelF[k]}, 0x{ONES_BF:x}, {Mk[k]}')
    a(f'v_cmp_eq_u32 vcc, {t[6]}, {t[3]}')
    for k in range(4):
        a(f'v_cndmask_b32 {Mk[k]}, 0, {Mk[k]}, vcc')
        a(f'v_and_b32 {SelD[k]}, 0x{ONES_BF:x}, {Mk[k]}')
    a('s_waitcnt vmcnt(8)')
    stamp(2, False)
    a(f'v_mov_b32 {Gs[0]}, 0')
    a(f'v_mov_b32 {Gs[1]}, 0')
    for k in range(16):
        a(f'v_dot2_f32_bf16 {Gs[0]}, {W4[k]}, {Ones[0]}, {Gs[0]}')
    for k in range(16):
        a(f'v_dot2_f32_bf16 {Gs[1]}, {W4[k]}, {W4[k]}, {Gs[1]}')
    a(f's_cmp_eq_u32 {sW}, {sKq}')
    a('s_cbranch_scc0 L_nofr')
    for m in range(4):
        a(f'ds_write_b128 {lFRw}, {W4[4 * m:4 * m + 4]} offset:{A_FR + 1024 * m}')
    a.label('L_nofr')
    a(f'v_add_u32 {lFRw}, {sM0}, {lFRw}')
    a(f'ds_write2st64_b32 {lSTw}, {Gs[0]}, {Gs[1]} offset0:0 offset1:4')
    def unpack(dst, lo, hi):
        a(f'v_and_b32 {dst[3]}, 0xffff0000, {hi}')
        a(f'v_lshlrev_b32 {dst[2]}, 16, {hi}')
        a(f'v_and_b32 {dst[1]}, 0xffff0000, {lo}')
        a(f'v_lshlrev_b32 {dst[0]}, 16, {lo}')
    unpack(xo, xo[0], xo[1]); unpack(b1r, b1r[0], b1r[1]); unpack(b2h, b2h[0], b2h[1])
    for k in range(4):
        a(f'v_mul_f32 {xc[k]}, 0.5, {xo[k]}')
        a(f'v_mul_f32 {b2h[k]}, 0.5, {b2h[k]}')
    a('s_waitcnt lgkmcnt(0)')
    a('s_barrier')

    def read64(abase, cs):
        for s in range(8):
            for hf in range(2):
                a(f'ds_read_b64_tr_b16 {ar(abase + 4 * s + 2 * hf, 2)}, {l64} offset:{SLOT[0] + s * 4096 + hf * 512}')
        a('s_waitcnt lgkmcnt(0)')
        for s in range(8):
            a(f'v_mfma_f32_16x16x32_bf16 {cs}, {ar(abase + 4 * s, 4)}, {Ones}, {cs if s else 0}')
    def read128(abase, slot, nst, last_half):
        a(f'v_add_u32 {t[0]}, {slot}, {l128}')
        a(f'v_xor_b32 {t[1]}, 32, {t[0]}')
        for tt in range(2):
            for s in range(nst):
                for hf in range(2):
                    if last_half and s == nst - 1 and hf == 1: continue
                    a(f'ds_read_b64_tr_b16 {ar(abase + 16 * tt + 4 * s + 2 * hf, 2)}, {t[tt]} offset:{s * 8192 + hf * 4096}')
    read64(aWq, csQ)
    stamp(3, False)
    a('s_branch L_Q_post')

    def stage_gemv64(name, par_in, abase, cs, double_ln, l0_extra, l0_wait, l0_post, sl, st0):
        sleep(sl)
        loads = [f'buffer_load_dwordx4 {Gd[0:4]}, {aE}, {ws}, 0 offen sc1',
                 f'buffer_load_dwordx2 {Gs}, {aES}, {ws}, 0 offen sc1']
        body = [f'ds_write_b128 {lFRw}, {Gd[0:4]} offset:{A_FR}',
                f'ds_write2st64_b32 {lSTw}, {Gs[0]}, {Gs[1]} offset0:0 offset1:4'] + \
            check([Gd[0], Gd[1], Gd[2], Gd[3], Gs[0], Gs[1]], par_in)
        gather(name, loads, l0_extra, l0_wait, body, RIDX[name])
        stamp(st0)
        a('s_waitcnt lgkmcnt(0)')
        a('s_barrier')
        if l0_post is not None:
            a(f's_cmp_eq_u32 {sLayer}, 0')
            a(f's_cbranch_scc0 L_{name}_post')
            l0_post()
        a.label(f'L_{name}_post')
        a(f'ds_read_b128 {U[0:4]}, {lSTr}')
        a(f'ds_read_b128 {U[4:8]}, {lSTr} offset:1024')
        for s in range(8):
            a(f'ds_read_b128 {F[4 * s:4 * s + 4]}, {lR1 if s & 1 else lR0} offset:{A_FR + 512 * s}')
        st = []
        st.append(f'v_add_f32 {U[0]}, {U[0]}, {U[1]}')
        st.append(f'v_add_f32 {U[4]}, {U[4]}, {U[5]}')
        st.append(f'v_add_f32 {U[2]}, {U[2]}, {U[3]}')
        st.append(f'v_add_f32 {U[6]}, {U[6]}, {U[7]}')
        st.append(f'v_add_f32 {U[0]}, {U[0]}, {U[2]}')
        st.append(f'v_add_f32 {U[4]}, {U[4]}, {U[6]}')
        st.append(f'v_permlane16_swap_b32 {U[0]}, {U[4]}')
        st.append(f'v_add_f32 {U[0]}, {U[0]}, {U[4]}')
        st.append(f'v_add_f32_dpp {U[0]}, {U[0]}, {U[0]} row_ror:8 row_mask:0xf bank_mask:0xf')
        st.append(f'v_mov_b32 {U[1]}, {U[0]}')
        st.append(f'v_permlane32_swap_b32 {U[0]}, {U[1]}')
        st.append(f'v_add_f32 {U[0]}, {U[0]}, {U[1]}')
        st.append(f'v_mov_b32 {U[1]}, {U[0]}')
        st.append(f'v_permlane16_swap_b32 {U[0]}, {U[1]}')
        st.append(f'v_mul_f32 {U[0]}, 0x{f2u(1 / 1024):x}, {U[0]}')
        st.append(f'v_mul_f32 {U[2]}, {U[0]}, {U[0]}')
        st.append(f'v_mov_b32 {U[3]}, 0x{f2u(1 / 1024):x}')
        st.append(f'v_fma_f32 {U[1]}, {U[1]}, {U[3]}, -{U[2]}')
        st.append(f'v_max_f32 {U[1]}, 0, {U[1]}')
        st.append(f'v_add_f32 {U[2]}, 0x{f2u(1e-5):x}, {U[1]}')
        st.append(f'v_rsq_f32 {sn[0]}, {U[2]}')
        if double_ln:
            st.append(f'v_mul_f32 {U[2]}, {sn[0]}, {sn[0]}')
            st.append(f'v_mov_b32 {U[3]}, 0x{f2u(1e-5):x}')
            st.append(f'v_fma_f32 {U[2]}, {U[2]}, {U[1]}, {U[3]}')
            st.append(f'v_rsq_f32 {U[2]}, {U[2]}')
            st.append(f'v_mul_f32 {sn[0]}, {sn[0]}, {U[2]}')
        st.append(f'v_mul_f32 {sn[1]}, {U[0]}, {sn[0]}')
        a('s_waitcnt lgkmcnt(7)')
        k = 0
        for s in range(8):
            if s: a(f's_waitcnt lgkmcnt({7 - s})')
            d = acc[0:4] if (s & 1) == 0 else acc[4:8]
            a(f'v_mfma_f32_16x16x32_bf16 {d}, {ar(abase + 4 * s, 4)}, {F[4 * s:4 * s + 4]}, {d if s > 1 else 0}')
            for _ in range(3):
                if k < len(st): a(st[k]); k += 1
        while k < len(st): a(st[k]); k += 1
        a(f'v_pk_add_f32 {acc[0:2]}, {acc[0:2]}, {acc[4:6]}')
        a(f'v_pk_add_f32 {acc[2:4]}, {acc[2:4]}, {acc[6:8]}')
        a(f'v_pk_mul_f32 {acc[0:2]}, {acc[0:2]}, {sn} op_sel_hi:[1,0]')
        a(f'v_pk_mul_f32 {acc[2:4]}, {acc[2:4]}, {sn} op_sel_hi:[1,0]')
        a(f'v_pk_fma_f32 {acc[0:2]}, {cs[0:2]}, {sn}, {acc[0:2]} op_sel:[0,1,0] op_sel_hi:[1,1,1] neg_lo:[0,1,0] neg_hi:[0,1,0]')
        a(f'v_pk_fma_f32 {acc[2:4]}, {cs[2:4]}, {sn}, {acc[2:4]} op_sel:[0,1,0] op_sel_hi:[1,1,1] neg_lo:[0,1,0] neg_hi:[0,1,0]')
        a(f'v_cvt_pk_bf16_f32 {Pk[0]}, {acc[0]}, {acc[1]}')
        a(f'v_cvt_pk_bf16_f32 {Pk[1]}, {acc[2]}, {acc[3]}')
        a(tag(Pk[0], sPar)); a(tag(Pk[1], sPar))
        a(f'v_mov_b32 {Pk[2]}, {Pk[0]}')
        a(f'v_mov_b32 {Pk[3]}, {Pk[1]}')
        a(f'v_permlane16_swap_b32 {Pk[0]}, {Pk[2]}')
        a(f'v_permlane16_swap_b32 {Pk[1]}, {Pk[3]}')

    def epilogue128(vaddr, off):
        for k in range(4):
            a(f'v_cvt_pk_bf16_f32 {Pk[k]}, {acc[2 * k]}, {acc[2 * k + 1]}')
        for k in range(4): a(tag(Pk[k], sPar))
        a(f'v_permlane16_swap_b32 {Pk[0]}, {Pk[2]}')
        a(f'v_permlane16_swap_b32 {Pk[1]}, {Pk[3]}')
        setexec(0x00FF00FF00FF00FF)
        a(f'buffer_store_dwordx4 {Pk}, {vaddr}, {ws}, {sOwn} offen offset:{off} sc1')
        setexec(ALL)

    def main128(abase, area, nst=4, last_half=False):
        for s in range(nst):
            if last_half and s == nst - 1:
                a(f'ds_read_b64 {F[4 * s:4 * s + 2]}, {lR1 if s & 1 else lR0} offset:{area + 512 * s}')
            else:
                a(f'ds_read_b128 {F[4 * s:4 * s + 4]}, {lR1 if s & 1 else lR0} offset:{area + 512 * s}')
        for s in range(nst):
            a(f's_waitcnt lgkmcnt({nst - 1 - s})')
            for tt in range(2):
                d = acc[4 * tt:4 * tt + 4]
                if last_half and s == nst - 1:
                    a(f'v_mfma_f32_16x16x16_bf16 {d}, {ar(abase + 16 * tt + 4 * s, 2)}, {F[4 * s:4 * s + 2]}, {d}')
                else:
                    a(f'v_mfma_f32_16x16x32_bf16 {d}, {ar(abase + 16 * tt + 4 * s, 4)}, {F[4 * s:4 * s + 4]}, {d if s else 0}')

    def stage_x(name, off, par_out, l0_extra, l0_wait, sl, st0, final_check):
        sleep(sl)
        if final_check:
            a(f's_cmp_eq_u32 {sLayer}, 0')
            a(f's_cbranch_scc1 L_{name}_go')
            a(f's_lshr_b32 {sT0}, {sJ}, 1')
            a(f's_cmp_eq_u32 {sT0}, {sW}')
            a('s_cbranch_scc0 L_fin')
            a.label(f'L_{name}_go')
        loads = [f'buffer_load_dwordx4 {Gd[4 * m:4 * m + 4]}, {aX}, {ws}, {sC64[m] if m else 0} offen offset:{off} sc1' for m in range(4)]
        mf = [f'v_mfma_f32_16x16x32_bf16 {acc[0:4]}, {SelF}, {Gd[4 * m:4 * m + 4]}, {acc[0:4] if m else xc}' for m in range(4)]
        body = interleave(mf, check([Gd[k] for k in range(16)], sPar), 3)
        gather(name, loads, l0_extra, l0_wait, body, RIDX[name])
        stamp(st0)
        for k in range(4):
            a(f'v_add_f32_dpp {acc[k]}, {acc[k]}, {acc[k]} row_ror:8 row_mask:0xf bank_mask:0xf')
        a(f'v_cvt_pk_bf16_f32 {Pk[0]}, {acc[0]}, {acc[1]}')
        a(f'v_cvt_pk_bf16_f32 {Pk[1]}, {acc[2]}, {acc[3]}')
        if final_check:
            a(f's_cmp_eq_u32 {sLayer}, 0')
            a('s_cbranch_scc0 L_out')
        if par_out == 0:
            a(f'v_and_b32 {Pk[2]}, -2, {Pk[0]}'); a(f'v_and_b32 {Pk[3]}, -2, {Pk[1]}')
        else:
            a(f'v_or_b32 {Pk[2]}, 1, {Pk[0]}'); a(f'v_or_b32 {Pk[3]}, 1, {Pk[1]}')
        a(f'v_dot2_f32_bf16 {U[0]}, {Pk[2]}, {Ones[0]}, 0')
        a(f'v_dot2_f32_bf16 {U[1]}, {Pk[2]}, {Pk[2]}, 0')
        a(f'v_dot2_f32_bf16 {U[0]}, {Pk[3]}, {Ones[0]}, {U[0]}')
        a(f'v_dot2_f32_bf16 {U[1]}, {Pk[3]}, {Pk[3]}, {U[1]}')
        local_store(name + 'x', [(0x00FF00FF, f'buffer_store_dwordx2 {Pk[2:4]}, {pX}, {ws}, {sOwn} offen')])
        setexec(ALL)
        a(f'v_permlane16_swap_b32 {U[0]}, {U[1]}')
        a(f'v_add_f32 {U[0]}, {U[0]}, {U[1]}')
        a(f'v_add_f32_dpp {U[0]}, {U[0]}, {U[0]} quad_perm:[1,0,3,2] row_mask:0xf bank_mask:0xf')
        a(f'v_add_f32_dpp {U[0]}, {U[0]}, {U[0]} quad_perm:[2,3,0,1] row_mask:0xf bank_mask:0xf')
        a(tag(U[0], par_out))
        local_store(name + 's', [(0x110011, f'buffer_store_dword {U[0]}, {pXS}, {ws}, 0 offen')])
        setexec(ALL)
        unpack(xo, Pk[0], Pk[1])
        for k in range(4):
            if par_out == 0:
                a(f'v_fma_f32 {xc[k]}, {xo[k]}, 0.5, {b2h[k]}')
            else:
                a(f'v_mul_f32 {xc[k]}, 0.5, {xo[k]}')
        stamp(st0 + 1)

    a.label('L_layer')
    stage_gemv64('Q', 1, aWq, csQ, False, None, 0, None, 'sl_E2', 4)
    setexec(0x000000FF000000FF)
    a(f'buffer_store_dwordx4 {Pk}, {pQ}, {ws}, {sOwn} offen offset:{QOFF} sc1')
    setexec(ALL)
    stamp(5)
    a(f's_cmp_eq_u32 {sLayer}, 0')
    a('s_cbranch_scc0 L_A')
    a(f'v_lshlrev_b32 {t[0]}, 2, {vL}')
    a(f'buffer_load_dword {t[1]}, {t[0]}, {srd["dbg"]}, 0 offen sc1')
    dma(8, dV, 'v', sO_kv, 4096, SLOT[2])
    a('s_waitcnt vmcnt(8)')
    a.label('L_flagchk')
    a(f'v_and_b32 {t[2]}, 0x80808080, {t[1]}')
    a(f'v_cmp_ne_u32 vcc, 0x80808080, {t[2]}')
    a('s_cbranch_vccz L_flagok')
    a(f's_sub_u32 {sRetry}, {sRetry}, 1')
    a('s_cbranch_scc1 L_flagdead')
    if dbg:
        a(f'v_readlane_b32 {sT2}, {vStamp}, 27')
        a('s_nop 4')
        a(f's_add_u32 {sT2}, {sT2}, 1')
        a(f'v_writelane_b32 {vStamp}, {sT2}, 27')
    a('s_sleep 2')
    a(f'buffer_load_dword {t[1]}, {t[0]}, {srd["dbg"]}, 0 offen sc1')
    a('s_waitcnt vmcnt(0)')
    a('s_branch L_flagchk')
    a.label('L_flagdead')
    a(f's_mov_b32 {sRetry}, 0')
    a.label('L_flagok')
    a(f'v_readlane_b32 {sT0}, {t[1]}, 0')
    a(f'v_readlane_b32 {sT1}, {t[1]}, 1')
    a(f'v_and_b32 {t[2]}, 1, {vL}')
    a(f'v_cmp_eq_u32 vcc, 1, {t[2]}')
    a(f'v_mov_b32 {t[3]}, {sT0}')
    a(f'v_mov_b32 {t[4]}, {sT1}')
    a(f'v_cndmask_b32 {t[3]}, {t[3]}, {t[4]}, vcc')
    a(f'v_cmp_ne_u32 vcc, {t[3]}, {t[1]}')
    a(f's_cmp_eq_u64 vcc, 0')
    a(f's_cselect_b32 {sLocal}, {0 if P["force_slow"] else 1}, 0')
    a(f's_cmp_eq_u32 {sW}, 0')
    a('s_cbranch_scc0 L_notouch')
    a(f'v_lshlrev_b32 {t[2]}, 7, {vL}')
    a(f'v_add_u32 {t[3]}, {HOFF}, {t[2]}')
    a(f'v_add_u32 {t[4]}, {XOFF - 1024}, {t[2]}')
    a(f'v_cmp_gt_u32 vcc, 8, {vL}')
    a(f'v_cndmask_b32 {t[3]}, {t[4]}, {t[3]}, vcc')
    a(f'v_add_u32 {t[3]}, {sOwn}, {t[3]}')
    a(f'v_cmp_gt_u32 vcc, 12, {vL}')
    a(f'v_cndmask_b32 {t[3]}, {pXS}, {t[3]}, vcc')
    setexec(0x1fff)
    a(f'buffer_load_dword {t[5]}, {t[3]}, {ws}, 0 offen sc1')
    setexec(ALL)
    a.label('L_notouch')
    stamp(6, False)
    a('s_branch L_A0')
    a.label('L_A')
    sleep('sl_B')
    a.label('L_A0')
    loads = [f'buffer_load_dwordx4 {Gd[4 * m:4 * m + 4]}, {aQg}, {ws}, {sC16[m] if m else 0} offen sc1' for m in range(2)]
    mf = [f'v_mfma_f32_16x16x32_bf16 {acc[0:4]}, {SelD}, {Gd[4 * m:4 * m + 4]}, {acc[0:4] if m else 0}' for m in range(2)]
    body = interleave(mf, check([Gd[k] for k in range(8)], sPar), 3)
    gather('A', loads, lambda: dma(8, dW, 'wo', sO_wo, 32768, SLOT[3]), 8, body, RIDX['A'])
    stamp(7)
    a(f'v_cvt_pk_bf16_f32 {Pk[0]}, {acc[0]}, {acc[1]}')
    a(f'v_cvt_pk_bf16_f32 {Pk[1]}, {acc[2]}, {acc[3]}')
    a(f'ds_write_b64 {lQw}, {Pk[0:2]} offset:{A_Q}')
    a('s_waitcnt lgkmcnt(0)')
    a('s_barrier')
    a(f's_cmp_eq_u32 {sLayer}, 0')
    a('s_cbranch_scc0 L_A_post')
    a(f's_lshl_b32 {sT0}, {sW}, 13')
    a(f'v_xor_b32 {t[0]}, {vG}, {vI}')
    a(f'v_lshlrev_b32 {t[0]}, 4, {t[0]}')
    a(f'v_lshl_add_u32 {t[0]}, {vI}, 8, {t[0]}')
    a(f'v_add_u32 {t[2]}, {sT0}, {t[0]}')
    for s in (1, 2, 3): a(f'v_xor_b32 {t[2 + s]}, {64 * s}, {t[2]}')
    for tt in range(2):
        for s in range(4):
            a(f'ds_read_b128 {ar(aK + 16 * tt + 4 * s, 4)}, {t[2 + s]} offset:{SLOT[1] + 4096 * tt}')
    read128(aV, SLOT[2], 4, False)
    a('s_waitcnt lgkmcnt(0)')
    a.label('L_A_post')
    main128(aK, A_Q)
    a(f'v_max3_f32 {U[0]}, {acc[0]}, {acc[1]}, {acc[2]}')
    a(f'v_max3_f32 {U[1]}, {acc[4]}, {acc[5]}, {acc[6]}')
    a(f'v_max3_f32 {U[0]}, {U[0]}, {acc[3]}, {acc[7]}')
    a(f'v_max_f32 {U[0]}, {U[0]}, {U[1]}')
    a(f'v_mov_b32 {U[1]}, {U[0]}')
    a(f'v_permlane16_swap_b32 {U[0]}, {U[1]}')
    a(f'v_max_f32 {U[0]}, {U[0]}, {U[1]}')
    a(f'v_mov_b32 {U[1]}, {U[0]}')
    a(f'v_permlane32_swap_b32 {U[0]}, {U[1]}')
    a(f'v_max_f32 {U[0]}, {U[0]}, {U[1]}')
    a(f'v_mul_f32 {U[0]}, {sScale}, {U[0]}')
    a(f'v_ceil_f32 {U[0]}, {U[0]}')
    for k in range(8):
        a(f'v_fma_f32 {acc[k]}, {acc[k]}, {sScale}, -{U[0]}')
    for k in range(8):
        a(f'v_exp_f32 {acc[k]}, {acc[k]}')
    a(f'v_cvt_i32_f32 {U[2]}, {U[0]}')
    for k in range(4):
        a(f'v_cvt_pk_bf16_f32 {Pk[k]}, {acc[2 * k]}, {acc[2 * k + 1]}')
    a(f'ds_write_b128 {lPw}, {Pk} offset:{A_P}')
    a(f'v_dot2_f32_bf16 {U[3]}, {Pk[0]}, {Ones[0]}, 0')
    for k in (1, 2, 3):
        a(f'v_dot2_f32_bf16 {U[3]}, {Pk[k]}, {Ones[0]}, {U[3]}')
    a(f'v_mov_b32 {U[4]}, {U[3]}')
    a(f'v_permlane16_swap_b32 {U[3]}, {U[4]}')
    a(f'v_add_f32 {U[3]}, {U[3]}, {U[4]}')
    a(f'v_mov_b32 {U[4]}, {U[3]}')
    a(f'v_permlane32_swap_b32 {U[3]}, {U[4]}')
    a(f'v_add_f32 {U[3]}, {U[3]}, {U[4]}')
    a(f'ds_write2_b32 {lPMw}, {U[2]}, {U[3]} offset0:0 offset1:32')
    a('s_waitcnt lgkmcnt(0)')
    a('s_barrier')
    a(f'ds_read_b128 {U[0:4]}, {lPMr}')
    for s in range(4):
        a(f'ds_read_b128 {F[4 * s:4 * s + 4]}, {lR1 if s & 1 else lR0} offset:{A_P + 512 * s}')
    a(f'ds_read_b128 {U[4:8]}, {lPMr} offset:128')
    a('s_waitcnt lgkmcnt(5)')
    a(f'v_max3_i32 {t[0]}, {U[0]}, {U[1]}, {U[2]}')
    a(f'v_max_i32 {t[0]}, {t[0]}, {U[3]}')
    a(f's_mov_b32 {sT0}, 0x800080')
    for s in range(4):
        a(f'v_sub_u32 {U[s]}, {t[0]}, {U[s]}')
    for s in range(4):
        a(f'v_min_u32 {t[1 + s]}, 255, {U[s]}')
    for s in range(4):
        a(f'v_mul_u32_u24 {t[1 + s]}, {sT0}, {t[1 + s]}')
    lsum = [f'v_sub_u32 {U[s]}, 0, {U[s]}' for s in range(4)] + \
           [f'v_ldexp_f32 {U[4 + s]}, {U[4 + s]}, {U[s]}' for s in range(4)] + \
           [f'v_add_f32 {U[4]}, {U[4]}, {U[5]}', f'v_add_f32 {U[6]}, {U[6]}, {U[7]}', f'v_add_f32 {Gs[1]}, {U[4]}, {U[6]}',
            tag(Gs[1], sPar), f'v_lshl_or_b32 {Gs[0]}, {t[0]}, 1, {sPar}']
    for s in range(4):
        a(f's_waitcnt lgkmcnt({4 - s})')
        for k in range(4):
            a(f'v_pk_sub_u16 {F[4 * s + k]}, {F[4 * s + k]}, {t[1 + s]} clamp')
        if s == 3: a('s_waitcnt lgkmcnt(0)')
        for tt in range(2):
            d = acc[4 * tt:4 * tt + 4]
            a(f'v_mfma_f32_16x16x32_bf16 {d}, {ar(aV + 16 * tt + 4 * s, 4)}, {F[4 * s:4 * s + 4]}, {d if s else 0}')
    for x in lsum: a(x)
    a(f's_cmp_eq_u32 {sW}, 0')
    a('s_cbranch_scc0 L_A_nost')
    setexec(0xff)
    a(f'buffer_store_dwordx2 {Gs}, {pOS}, {ws}, 0 offen sc1')
    setexec(ALL)
    a.label('L_A_nost')
    epilogue128(pO, 0)
    stamp(8)
    sleep('sl_C')
    loads = [f'buffer_load_dwordx2 {Gs}, {aOs}, {ws}, 0 offen sc1'] + \
            [f'buffer_load_dwordx4 {Gd[4 * m:4 * m + 4]}, {aOg}, {ws}, {sC16[m] if m else 0} offen sc1' for m in range(4)]
    pre = [f'v_max_i32_dpp {U[0]}, {Gs[0]}, {Gs[0]} quad_perm:[1,0,3,2] row_mask:0xf bank_mask:0xf',
           f'v_max_i32_dpp {U[0]}, {U[0]}, {U[0]} quad_perm:[2,3,0,1] row_mask:0xf bank_mask:0xf',
           f'v_max_i32_dpp {U[0]}, {U[0]}, {U[0]} row_half_mirror row_mask:0xf bank_mask:0xf',
           f'v_sub_u32 {U[0]}, {Gs[0]}, {U[0]}',
           f'v_add_u32 {U[0]}, 254, {U[0]}',
           f'v_max_i32 {U[0]}, 0, {U[0]}',
           f'v_mul_u32_u24 {U[0]}, 0x400040, {U[0]}']
    chk = check([Gd[k] for k in range(16)] + [Gs[0], Gs[1]], sPar)
    body = []
    for i, x in enumerate(pre):
        body.append(x)
        if i < 3:
            body.append(chk.pop(0)); body.append(chk.pop(0))
    body.append(chk.pop(0)); body.append(chk.pop(0))
    lnorm = [f'v_and_b32 {U[1]}, 0xffff0000, {U[0]}', f'v_mul_f32 {U[1]}, {U[1]}, {Gs[1]}',
             f'v_add_f32_dpp {U[1]}, {U[1]}, {U[1]} quad_perm:[1,0,3,2] row_mask:0xf bank_mask:0xf',
             f'v_add_f32_dpp {U[1]}, {U[1]}, {U[1]} quad_perm:[2,3,0,1] row_mask:0xf bank_mask:0xf',
             f'v_add_f32_dpp {U[1]}, {U[1]}, {U[1]} row_half_mirror row_mask:0xf bank_mask:0xf',
             f'v_rcp_f32 {sn[0]}, {U[1]}']
    for m in range(4):
        for k in range(4):
            body.append(f'v_and_b32_dpp {W4[4 * m + k]}, {U[0]}, {Mk[k]} row_newbcast:{m} row_mask:0xf bank_mask:0xf')
        if m:
            body.append(f'v_mfma_f32_16x16x32_bf16 {acc[0:4]}, {W4[4 * m - 4:4 * m]}, {Gd[4 * m - 4:4 * m]}, {acc[0:4] if m > 1 else 0}')
    x = []
    while chk or lnorm:
        if lnorm: x.append(lnorm.pop(0))
        for _ in range(2):
            if chk: x.append(chk.pop(0))
    body.append(x.pop(0)); body.append(x.pop(0))
    body.append(f'v_mfma_f32_16x16x32_bf16 {acc[0:4]}, {W4[12:16]}, {Gd[12:16]}, {acc[0:4]}')
    body += x
    def o_extra():
        a(f's_cmp_lt_u32 {sC}, 28')
        a('s_cbranch_scc0 L_O_w1')
        dma(8, dW1, 'w1', sO_w1, 32 * 7168, SLOT[0])
    gather('O', loads, o_extra, 8, body, RIDX['O'])
    stamp(9)
    a(f'v_pk_mul_f32 {acc[0:2]}, {acc[0:2]}, {sn} op_sel_hi:[1,0]')
    a(f'v_pk_mul_f32 {acc[2:4]}, {acc[2:4]}, {sn} op_sel_hi:[1,0]')
    a(f'v_cvt_pk_bf16_f32 {Pk[0]}, {acc[0]}, {acc[1]}')
    a(f'v_cvt_pk_bf16_f32 {Pk[1]}, {acc[2]}, {acc[3]}')
    a(f'ds_write_b64 {lVw}, {Pk[0:2]} offset:{A_O}')
    a('s_waitcnt lgkmcnt(0)')
    a('s_barrier')
    a(f's_cmp_eq_u32 {sLayer}, 0')
    a('s_cbranch_scc0 L_O_post')
    read128(aWo, SLOT[3], 4, False)
    a('s_waitcnt lgkmcnt(0)')
    a.label('L_O_post')
    main128(aWo, A_O)
    epilogue128(pD, 0)
    stamp(10)
    stage_x('X1', 0, 0, lambda: dma(4, dW, 'w2', sO_w2, 32768, SLOT[1]), 4, 'sl_D', 11, False)
    a(f's_cmp_lt_u32 {sC}, 28')
    a('s_cbranch_scc1 L_M1')
    a(f's_cmp_eq_u32 {sLayer}, 0')
    a('s_cbranch_scc0 L_M2')
    dma(3, dW, 'w2', sO_w2, 32768, SLOT[1], 4)
    a('s_branch L_M2')
    a.label('L_M1')
    stage_gemv64('M', 0, aW1, cs1, True, lambda: dma(3, dW, 'w2', sO_w2, 32768, SLOT[1], 4), 3, lambda: read64(aW1, cs1), 'sl_E', 13)
    local_store('Mh', [(0x000000FF000000FF, f'buffer_store_dwordx4 {Pk}, {pQ}, {ws}, {sOwn} offen offset:{HOFF}')])
    setexec(ALL)
    stamp(14)
    sleep('sl_F')
    a.label('L_M2')
    loads = [f'buffer_load_dwordx4 {Gd[4 * m:4 * m + 4]}, {aF}, {ws}, {sC16[m] if m else 0} offen sc1' for m in range(2)]
    mf = [f'v_mfma_f32_16x16x32_bf16 {acc[0:4]}, {SelD}, {Gd[4 * m:4 * m + 4]}, {acc[0:4] if m else b1r}' for m in range(2)]
    body = interleave(mf, check([Gd[k] for k in range(8)], sPar), 3)
    gather('H', loads, None, 0, body, RIDX['H'])
    stamp(15)
    for h in (0, 2):
        a(f'v_pk_mul_f32 {U[h:h + 2]}, {acc[h:h + 2]}, {acc[h:h + 2]}')
    for h in (0, 2):
        a(f'v_pk_fma_f32 {U[h:h + 2]}, {U[h:h + 2]}, {sC1}, {C0}')
    for h in (0, 2):
        a(f'v_pk_mul_f32 {U[h:h + 2]}, {U[h:h + 2]}, {acc[h:h + 2]}')
    for k in range(4): a(f'v_exp_f32 {U[k]}, {U[k]}')
    for h in (0, 2):
        a(f'v_pk_add_f32 {U[h:h + 2]}, {U[h:h + 2]}, {One2}')
    for k in range(4): a(f'v_rcp_f32 {U[k]}, {U[k]}')
    for h in (0, 2):
        a(f'v_pk_mul_f32 {U[h:h + 2]}, {U[h:h + 2]}, {acc[h:h + 2]}')
    a(f'v_cvt_pk_bf16_f32 {Pk[0]}, {U[0]}, {U[1]}')
    a(f'v_cvt_pk_bf16_f32 {Pk[1]}, {U[2]}, {U[3]}')
    a(f'ds_write_b64 {lVw}, {Pk[0:2]} offset:{A_H}')
    a('s_waitcnt lgkmcnt(0)')
    a('s_barrier')
    a(f's_cmp_eq_u32 {sLayer}, 0')
    a('s_cbranch_scc0 L_H_post')
    read128(aW2, SLOT[1], 4, True)
    a('s_waitcnt lgkmcnt(0)')
    a.label('L_H_post')
    main128(aW2, A_H, 4, True)
    epilogue128(pD, GOFF - DOFF)
    stamp(17)
    stage_x('X2', GOFF - DOFF, 1, None, 0, 'sl_G', 18, True)
    a(f's_mov_b32 {sLayer}, 1')
    a(f's_mov_b32 {sPar}, 1')
    a('s_branch L_layer')

    a.label('L_out')
    a(f'v_and_b32 {t[0]}, 63, {pX}')
    a(f's_lshl_b32 {sT0}, {sJ}, 11')
    a(f's_lshl_b32 {sT1}, {sC}, 6')
    a(f's_add_u32 {sT0}, {sT0}, {sT1}')
    a(f's_and_b32 {sT1}, {sJ}, 1')
    a(f's_lshl_b32 {sT1}, {sT1}, 2')
    a(f's_lshl_b32 {sT1}, 0x000f000f, {sT1}')
    a(f's_mov_b32 exec_lo, {sT1}')
    a('s_mov_b32 exec_hi, 0')
    a(f'buffer_store_dwordx2 {Pk[0:2]}, {t[0]}, {srd["out"]}, {sT0} offen')
    setexec(ALL)
    stamp(19)
    a.label('L_fin')
    if dbg:
        a(f's_lshl_b32 {sT0}, s2, 2')
        a(f's_add_u32 {sT0}, {sT0}, {sW}')
        a(f's_lshl_b32 {sT0}, {sT0}, 8')
        a(f's_add_u32 {sT0}, {sT0}, {STAMP_BASE}')
        a(f'v_lshlrev_b32 {t[0]}, 2, {vL}')
        a(f'buffer_store_dword {vStamp}, {t[0]}, {ws}, {sT0} offen')
    a('s_endpgm')
    for f in ool: f()
    a.label('L_end')
    a('s_endpgm')

    head = f'''; {NAME}: two (attention + MLP) decode layers in ONE persistent launch, 256 workgroups (one per CU).
; @launch grid=(256,1,1) block=(256,1,1) lds={LDS_BYTES}
.amdgcn_target "amdgcn-amd-amdhsa--gfx950"
.text
.globl {NAME}_kernel
.p2align 8
.type {NAME}_kernel,@function
{NAME}_kernel:
'''
    acc_off = (NV + 3) // 4 * 4
    tail = f'''.section .rodata,"a"
.p2align 6
.amdhsa_kernel {NAME}_kernel
  .amdhsa_next_free_vgpr {acc_off + 192}
  .amdhsa_next_free_sgpr {S.next}
  .amdhsa_accum_offset {acc_off}
  .amdhsa_group_segment_fixed_size 0
  .amdhsa_kernarg_size 104
  .amdhsa_user_sgpr_count 2
  .amdhsa_user_sgpr_kernarg_segment_ptr 1
  .amdhsa_system_sgpr_workgroup_id_x 1
  .amdhsa_float_denorm_mode_32 3
.end_amdhsa_kernel
'''
    return head + a.text() + tail

import struct
def f2u(x): return struct.unpack('<I', struct.pack('<f', x))[0]

if __name__ == '__main__':
    import ast
    out = sys.argv[1]
    kw = {}
    for s in sys.argv[2:]:
        k, v = s.split('=', 1)
        try: kw[k] = ast.literal_eval(v)
        except Exception: kw[k] = v
    open(out, 'w').write(gen(**kw))
```
